```python
import torch

def _softmax(x, axis=-1):
    return torch.softmax(x, dim=axis)
def _gelu(x):
    return torch.nn.functional.gelu(x, approximate="tanh")
def _silu(x):
    return torch.nn.functional.silu(x)
def _sigmoid(x):
    return torch.sigmoid(x)
def _layernorm(x, axis=-1, eps=1e-5):
    m = x.mean(dim=axis, keepdim=True)
    v = x.var(dim=axis, keepdim=True, unbiased=False)
    return (x - m) / torch.sqrt(v + eps)
def _scatter_add(tgt, idx, src, axis=0):
    return tgt.clone().index_add_(axis, idx, src)
def _segment_sum(src, seg, n):
    out = torch.zeros((n,) + src.shape[1:], dtype=src.dtype)
    return out.index_add_(0, seg, src)
def _pad(x, pw):
    flat = tuple(v for pair in reversed(pw) for v in pair)
    return torch.nn.functional.pad(x, flat)

kernel_name = 'parallel_sum__sliding_block__dense_activation_gelu__prompt'

def setup_inputs():

    _w = (lambda a: (lambda t: t.to(torch.bfloat16) if t.is_floating_point() else t)(torch.as_tensor(a)))
    def _A_setup():
        B, S, D = 1, 2048, 576
        return {
            "x": _w((lambda *s: torch.randn(*s, dtype=torch.bfloat16) * 0.05)(B, S, D)),
            "wqkv": _w((lambda *s: torch.randn(*s, dtype=torch.bfloat16) * 0.05)(D, 3 * D)),
            "wo": _w((lambda *s: torch.randn(*s, dtype=torch.bfloat16) * 0.05)(D, D)),
        }
    _A_in = _A_setup()

    def _B_setup():
        B, S, D, F = 1, 2048, 576, 4608
        return {
            "x": _w((lambda *s: torch.randn(*s, dtype=torch.bfloat16) * 0.05)(B, S, D)),
            "w1": _w((lambda *s: torch.randn(*s, dtype=torch.bfloat16) * 0.8)(D, F) * (D ** -0.5)),
            "b1": _w((lambda *s: torch.randn(*s, dtype=torch.bfloat16) * 0.8)(F) * 0.01),
            "w2": _w((lambda *s: torch.randn(*s, dtype=torch.bfloat16) * 0.8)(F, D) * (F ** -0.5)),
            "b2": _w((lambda *s: torch.randn(*s, dtype=torch.bfloat16) * 0.8)(D) * 0.01),
        }
    _B_in = _B_setup()

    return {
        "A_x": _A_in["x"],
        "A_wqkv": _A_in["wqkv"],
        "A_wo": _A_in["wo"],
        "B_x": _B_in["x"],
        "B_w1": _B_in["w1"],
        "B_b1": _B_in["b1"],
        "B_w2": _B_in["w2"],
        "B_b2": _B_in["b2"],
    }

def reference(A_x, A_wqkv, A_wo, B_x, B_w1, B_b1, B_w2, B_b2):
    def _A_ref(x, wqkv, wo):
        B, S, D = x.shape
        H = 32; Dh = D // H; W = 256
        qkv = (lambda x, *d: x.permute(*d))((x @ wqkv).reshape(B, S, 3, H, Dh), 2, 0, 3, 1, 4)
        q, k, v = qkv[0], qkv[1], qkv[2]
        scores = torch.einsum("bhqd,bhkd->bhqk", q, k) * (Dh ** -0.5)
        idx = torch.arange(S)
        mask = (idx[:, None] - idx[None, :] >= 0) & (idx[:, None] - idx[None, :] < W)
        scores = torch.where(mask[None, None], scores, -1e9)
        p = _softmax(scores, axis=-1)
        o = torch.einsum("bhqk,bhkd->bhqd", p, v)
        return (lambda x, *d: x.permute(*d))(o, 0, 2, 1, 3).reshape(B, S, D) @ wo

    def _B_ref(x, w1, b1, w2, b2):
        h = torch.einsum("bsd,df->bsf", x, w1) + b1
        h = _gelu(h)
        return torch.einsum("bsf,fd->bsd", h, w2) + b2

    x = A_x
    xn = _layernorm(x, axis=-1)
    return x + _A_ref(xn, A_wqkv, A_wo) + _B_ref(xn, B_w1, B_b1, B_w2, B_b2)
```

```python
class I:
    __slots__ = ("text", "kind", "vm", "lg", "wvm", "wlg", "nvm", "nlg", "cost")

    def __init__(self, text, kind="valu", vm=None, lg=None, wvm=None, wlg=None):
        self.text = text
        self.kind = kind
        self.vm = vm
        self.lg = lg
        self.wvm = wvm
        self.wlg = wlg
        self.nvm = None
        self.nlg = None
        self.cost = {"mfma": 2, "trans": 2, "label": 0}.get(kind, 1)


def mfma(t): return I(t, "mfma")
def valu(t): return I(t, "valu")
def trans(t): return I(t, "trans")
def salu(t): return I(t, "salu")
def ds(t, tag="ds"): return I(t, "ds", lg=tag)
def vmem(t, tag="vm"): return I(t, "vmem", vm=tag)
def bar(): return I("s_barrier", "bar")
def label(t): return I(t + ":", "label")
def nop(n): return I(f"s_nop {n}", "salu")
def wait(vm=None, lg=None): return I(None, "wait", wvm=vm, wlg=lg)
def waitall(): return I("s_waitcnt vmcnt(0) lgkmcnt(0)", "waitall")


def _tags(t, env):
    if t is None:
        return []
    if callable(t):
        t = t(env)
    if t is None:
        return []
    if isinstance(t, (list, tuple)):
        out = []
        for x in t:
            out += _tags(x, env)
        return out
    return [t]


class Sim:
    def __init__(self):
        self.vmq = []
        self.lgq = []

    def run(self, body, env):
        for ins in body:
            if ins.kind == "waitall":
                self.vmq = []
                self.lgq = []
                continue
            if ins.kind == "waitlg0":
                self.lgq = []
                continue
            if ins.kind == "wait":
                for (tags, q, attr, cap) in ((_tags(ins.wvm, env), self.vmq, "nvm", 63),
                                             (_tags(ins.wlg, env), self.lgq, "nlg", 15)):
                    if not tags and getattr(ins, "w" + attr[1:]) is None:
                        continue
                    n = cap
                    for t in tags:
                        pos = None
                        for i in range(len(q) - 1, -1, -1):
                            if q[i] == t:
                                pos = i
                                break
                        if pos is not None:
                            n = min(n, len(q) - 1 - pos, cap - 1)
                    cur = getattr(ins, attr)
                    setattr(ins, attr, n if cur is None else min(cur, n))
                continue
            if ins.vm is not None:
                self.vmq.append(_tags(ins.vm, env)[0])
            if ins.lg is not None:
                self.lgq.append(_tags(ins.lg, env)[0])


def render(body):
    out = []
    for ins in body:
        if ins.kind == "wait":
            parts = []
            if ins.nvm is not None and ins.nvm < 63:
                parts.append(f"vmcnt({ins.nvm})")
            if ins.nlg is not None and ins.nlg < 15:
                parts.append(f"lgkmcnt({ins.nlg})")
            assert not (ins.wvm is not None and ins.nvm is None), "wait never simulated"
            assert not (ins.wlg is not None and ins.nlg is None), "wait never simulated"
            if parts:
                out.append("    s_waitcnt " + " ".join(parts))
            else:
                out.append("    s_nop 0")
        elif ins.kind == "label":
            out.append(ins.text)
        else:
            out.append("    " + ins.text)
    return "\n".join(out)


def interleave(primary, secondary, start, end):
    if not secondary:
        return list(primary)
    total = sum(i.cost for i in secondary)
    ngaps = end - start
    out = []
    m = -1
    si = 0
    acc = 0.0
    for ins in primary:
        out.append(ins)
        if ins.kind == "mfma":
            m += 1
            if start <= m < end:
                target = total * (m - start + 1) / ngaps
                while si < len(secondary) and acc + secondary[si].cost * 0.5 <= target:
                    acc += secondary[si].cost
                    out.append(secondary[si])
                    si += 1
                if m == end - 1:
                    while si < len(secondary):
                        out.append(secondary[si])
                        si += 1
    assert si == len(secondary), "secondary stream not fully placed"
    return out


def merge(a, b):
    out = []
    ia = ib = 0
    na, nb = len(a), len(b)
    while ia < na or ib < nb:
        if ib >= nb or (ia < na and ia * nb <= ib * na):
            out.append(a[ia]); ia += 1
        else:
            out.append(b[ib]); ib += 1
    return out


KD = """.p2align 6
.amdhsa_kernel {name}
  .amdhsa_next_free_vgpr {vgpr}
  .amdhsa_next_free_sgpr {sgpr}
  .amdhsa_accum_offset {acc}
  .amdhsa_group_segment_fixed_size 0
  .amdhsa_kernarg_size 88
  .amdhsa_user_sgpr_count 2
  .amdhsa_user_sgpr_kernarg_segment_ptr 1
  .amdhsa_system_sgpr_workgroup_id_x 1
.end_amdhsa_kernel
"""


import os
DIAG = bool(int(os.environ.get("DIAG", "0")))
STAMP_OFF = 200 << 20


class Stamps:
    def __init__(self, base=72, kernel_slot=0):
        self.base = base
        self.n = 0
        self.slot = kernel_slot

    def static(self):
        if not DIAG:
            return []
        r = self.base + 2 + self.n
        self.n += 1
        return [I(f"s_memtime s[{self.base}:{self.base+1}]", "raw"), I("s_waitcnt lgkmcnt(0)", "waitlg0"),
                I(f"s_mov_b32 s{r}, s{self.base}", "raw")]

    def at(self, idx):
        if not DIAG:
            return []
        return [I(f"s_memtime s[{self.base}:{self.base+1}]", "raw"), I("s_waitcnt lgkmcnt(0)", "waitlg0"),
                I(f"s_mov_b32 s{self.base+2+idx}, s{self.base}", "raw")]

    def real(self, idx):
        if not DIAG:
            return []
        return [I(f"s_memrealtime s[{self.base}:{self.base+1}]", "raw"), I("s_waitcnt lgkmcnt(0)", "waitlg0"),
                I(f"s_mov_b32 s{self.base+16+idx}, s{self.base}", "raw")]

    def dynamic(self, counter):
        if not DIAG:
            return []
        return [I(f"s_memtime s[{self.base}:{self.base+1}]", "raw"), I("s_waitcnt lgkmcnt(0)", "waitlg0"),
                I(f"s_mov_b32 s{self.base+1}, m0", "raw"),
                I(f"s_mov_b32 m0, s{counter}", "raw"), I("s_nop 0", "raw"),
                I(f"s_movreld_b32 s{self.base+9}, s{self.base}", "raw"),
                I(f"s_mov_b32 m0, s{self.base+1}", "raw")]

    def flush(self, ws_lo, wave_sgpr, nwaves, vtmp):
        if not DIAG:
            return []
        o = [I(f"s_mul_i32 s{self.base}, s2, {nwaves}", "raw"),
             I(f"s_add_u32 s{self.base}, s{self.base}, s{wave_sgpr}", "raw"),
             I(f"s_lshl_b32 s{self.base}, s{self.base}, 7", "raw"),
             I(f"s_add_u32 s{self.base}, s{self.base}, {STAMP_OFF + self.slot * (1 << 20)}", "raw"),
             I(f"v_mov_b32 v{vtmp}, s{self.base}", "raw")]
        for i in range(16):
            o.append(I(f"v_mov_b32 v{vtmp+1}, s{self.base+2+i}", "raw"))
            o.append(I(f"global_store_dword v{vtmp}, v{vtmp+1}, s[{ws_lo}:{ws_lo+1}] offset:{4*i}", "raw"))
        return o


def code_prefetch(name, kib, spair, stmp, vtmp, sink):
    if os.environ.get("CPF", "1") != "1":
        return []
    n = (kib + 1) // 2
    magic = (1 << 16) // n + 1
    return [I(f"s_getpc_b64 s[{spair}:{spair+1}]", "raw"),
            I(f"L_{name}_pc:", "label"),
            I(f"v_lshrrev_b32 v{vtmp}, 6, v0", "raw"),
            I(f"s_and_b32 s{stmp}, s2, 0xf8", "raw"),
            I(f"v_add_u32 v{vtmp}, s{stmp}, v{vtmp}", "raw"),
            I(f"v_mul_u32_u24 v{vtmp+1}, {magic}, v{vtmp}", "raw"),
            I(f"v_lshrrev_b32 v{vtmp+1}, 16, v{vtmp+1}", "raw"),
            I(f"v_mul_u32_u24 v{vtmp+1}, {n}, v{vtmp+1}", "raw"),
            I(f"v_sub_u32 v{vtmp}, v{vtmp}, v{vtmp+1}", "raw"),
            I(f"v_lshlrev_b32 v{vtmp}, 11, v{vtmp}", "raw"),
            I(f"v_and_b32 v{vtmp+1}, 15, v0", "raw"),
            I(f"v_lshl_add_u32 v{vtmp}, v{vtmp+1}, 7, v{vtmp}", "raw"),
            I(f"v_min_u32 v{vtmp}, L_text_end-L_{name}_pc-4, v{vtmp}", "raw"),
            I("s_mov_b64 exec, 0xffff", "raw"),
            I(f"global_load_dword {sink}, v{vtmp}, s[{spair}:{spair+1}]", "raw"),
            I("s_mov_b64 exec, -1", "raw")]
```

```python
import sys, importlib
sys.path.insert(0, "dev")
from asmlib import *

HEADER = open("parallel_sum__sliding_block__dense_activation_gelu__prompt.s.ref").read().split("; Override")[0]


def make(kernels, path):
    built = []
    for lab, mod in kernels:
        m = importlib.import_module(mod)
        built.append((lab,) + m.build(lab))
    out = [HEADER.rstrip()]
    for lab, body, kd, la in built:
        out.append(f"; @launch kernel={lab}_kernel grid=({la['grid']},1,1) block=({la['block']},1,1) lds={la['lds']}")
    out.append('.amdgcn_target "amdgcn-amd-amdhsa--gfx950"')
    out.append(".text")
    for lab, body, kd, la in built:
        out.append(f".globl {lab}_kernel\n.p2align 8\n.type {lab}_kernel,@function\n{lab}_kernel:")
        out.append(render(body))
    out.append("L_text_end:")
    out.append('.section .rodata,"a"')
    for lab, body, kd, la in built:
        out.append(KD.format(name=lab + "_kernel", **kd))
    open(path, "w").write("\n".join(out) + "\n")


if __name__ == "__main__":
    names = sys.argv[2:]
    make([(n, n) for n in names], sys.argv[1])
```
